```python
import torch

def _softmax(x, axis=-1):
    return torch.softmax(x, dim=axis)
def _gelu(x):
    return torch.nn.functional.gelu(x, approximate="tanh")
def _silu(x):
    return torch.nn.functional.silu(x)
def _sigmoid(x):
    return torch.sigmoid(x)
def _layernorm(x, axis=-1, eps=1e-5):
    m = x.mean(dim=axis, keepdim=True)
    v = x.var(dim=axis, keepdim=True, unbiased=False)
    return (x - m) / torch.sqrt(v + eps)
def _scatter_add(tgt, idx, src, axis=0):
    return tgt.clone().index_add_(axis, idx, src)
def _segment_sum(src, seg, n):
    out = torch.zeros((n,) + src.shape[1:], dtype=src.dtype)
    return out.index_add_(0, seg, src)
def _pad(x, pw):
    flat = tuple(v for pair in reversed(pw) for v in pair)
    return torch.nn.functional.pad(x, flat)

kernel_name = 'standalone__controlnet__diffusion'

def setup_inputs():

    _w = (lambda a: (lambda t: t.to(torch.bfloat16) if t.is_floating_point() else t)(torch.as_tensor(a)))
    B, HW, C = 2, 128, 128
    sc = C ** -0.5
    return {
        "x_frozen": _w((lambda *s: torch.randn(*s, dtype=torch.bfloat16) * 0.05)(B, HW, HW, C)),
        "x": _w((lambda *s: torch.randn(*s, dtype=torch.bfloat16) * 0.1)(B, HW, HW, C)),
        "c": _w((lambda *s: torch.randn(*s, dtype=torch.bfloat16) * 0.4)(B, HW, HW, C)),
        "w_z1": _w((lambda *s: torch.randn(*s, dtype=torch.bfloat16) * 0.4)(C, C) * sc),
        "w_z2": _w((lambda *s: torch.randn(*s, dtype=torch.bfloat16) * 0.1)(C, C) * sc),
        "w_conv": _w((lambda *s: torch.randn(*s, dtype=torch.bfloat16) * 0.1)(3, 3, C, C) * sc / 3.0),
    }

def reference(x_frozen, x, c, w_z1, w_z2, w_conv):
    B, H, W, C = x.shape
    h_in = x + torch.einsum("bhwc,cd->bhwd", c, w_z1)
    h = _silu(_layernorm(h_in, axis=-1))
    hp = _pad(h, ((0, 0), (1, 1), (1, 1), (0, 0)))
    acc = h * 0.0
    for di in range(3):
        for dj in range(3):
            acc = acc + torch.einsum("bhwc,cd->bhwd", hp[:, di:di + H, dj:dj + W, :], w_conv[di, dj])
    h = h_in + acc
    return x_frozen + torch.einsum("bhwc,cd->bhwd", h, w_z2)
```

```python
import struct


class R:
    __slots__ = ("k", "i", "n")

    def __init__(self, k, i, n=1):
        self.k, self.i, self.n = k, i, n

    def __str__(self):
        if self.k in ("vcc", "exec", "m0"):
            return self.k
        if self.n == 1:
            return f"{self.k}{self.i}"
        return f"{self.k}[{self.i}:{self.i + self.n - 1}]"

    __repr__ = __str__

    def regs(self):
        if self.k in ("vcc", "exec", "m0"):
            return [(self.k, 0)]
        return [(self.k, j) for j in range(self.i, self.i + self.n)]

    def __getitem__(self, j):
        if isinstance(j, slice):
            a = j.start or 0
            b = j.stop if j.stop is not None else self.n
            assert 0 <= a < b <= self.n
            return R(self.k, self.i + a, b - a)
        assert 0 <= j < self.n, (self, j)
        return R(self.k, self.i + j, 1)


class Neg:
    def __init__(self, r):
        self.r = r

    def __str__(self):
        return "-" + str(self.r)

    def regs(self):
        return self.r.regs()


VCC = R("vcc", 0)
EXEC = R("exec", 0)
M0 = R("m0", 0)


def V(i, n=1):
    return R("v", i, n)


def A(i, n=1):
    return R("a", i, n)


def S(i, n=1):
    return R("s", i, n)


def f2u(x):
    return struct.unpack("<I", struct.pack("<f", x))[0]


def opstr(o):
    if isinstance(o, float):
        if o in (0.5, -0.5, 1.0, -1.0, 2.0, -2.0, 4.0, -4.0):
            return repr(o)
        if o == 0.0:
            return "0"
        return "0x%08x" % f2u(o)
    if isinstance(o, int):
        if -16 <= o <= 64:
            return str(o)
        return "0x%x" % (o & 0xFFFFFFFF)
    return str(o)


def regs_of(ops):
    out = []
    for o in ops:
        if hasattr(o, "regs"):
            out += o.regs()
    return out


class Inst:
    __slots__ = ("text", "kind", "rd", "wr", "srcc", "passes", "tok", "wide", "ab", "comment", "cost")

    def __init__(self, text, kind, rd=(), wr=(), srcc=(), passes=0, tok=None, wide=False, ab=()):
        self.text, self.kind = text, kind
        self.rd, self.wr = list(rd), list(wr)
        self.srcc = list(srcc)
        self.ab = list(ab)
        self.passes = passes
        self.tok = tok
        self.wide = wide
        self.comment = None


class Stream:
    _tok = [0]

    def __init__(self):
        self.I = []

    def add(self, inst):
        self.I.append(inst)
        return inst

    def extend(self, other):
        self.I += other.I if isinstance(other, Stream) else other

    def newtok(self):
        Stream._tok[0] += 1
        return Stream._tok[0]

    def valu(self, op, dst, *srcs, mods="", rmw=False, extra_rd=(), extra_wr=()):
        kind = "valu"
        if op.startswith(("v_exp_", "v_rcp_", "v_rsq_", "v_log_", "v_sqrt_", "v_sin_", "v_cos_")):
            kind = "trans"
        if op.startswith("v_permlane"):
            kind = "permlane"
        if op.startswith(("v_readfirstlane", "v_readlane")):
            kind = "readlane"
        rd = regs_of(srcs) + regs_of(extra_rd)
        wr = regs_of([dst]) + regs_of(extra_wr)
        if rmw or op.startswith(("v_fmac", "v_pk_fmac")):
            rd += regs_of([dst])
        if kind == "permlane":
            rd += regs_of([dst])
            wr += regs_of(srcs)
        text = f"{op} " + ", ".join(opstr(o) for o in (dst,) + srcs) + (" " + mods if mods else "")
        return self.add(Inst(text, kind, rd, wr))

    def salu(self, op, dst, *srcs):
        ops = ((dst,) if dst is not None else ()) + srcs
        text = f"{op} " + ", ".join(opstr(o) for o in ops)
        wr = regs_of([dst]) if dst is not None else []
        return self.add(Inst(text, "salu", regs_of(srcs), wr))

    def mfma32(self, d, a, b, c):
        text = f"v_mfma_f32_32x32x16_bf16 {d}, {a}, {b}, {opstr(c)}"
        return self.add(Inst(text, "mfma", regs_of([a, b, c]), regs_of([d]), srcc=regs_of([c]), passes=8, ab=regs_of([a, b])))

    def mfma16(self, d, a, b, c):
        text = f"v_mfma_f32_16x16x32_bf16 {d}, {a}, {b}, {opstr(c)}"
        return self.add(Inst(text, "mfma", regs_of([a, b, c]), regs_of([d]), srcc=regs_of([c]), passes=4, ab=regs_of([a, b])))

    def ds_read(self, op, dst, addr, offset=0):
        assert 0 <= offset < 65536, offset
        text = f"{op} {dst}, {addr}" + (f" offset:{offset}" if offset else "")
        return self.add(Inst(text, "ds_read", regs_of([addr]), regs_of([dst]), tok=self.newtok()))

    def ds_write(self, op, addr, data, offset=0):
        assert 0 <= offset < 65536, offset
        text = f"{op} {addr}, {data}" + (f" offset:{offset}" if offset else "")
        return self.add(Inst(text, "ds_write", regs_of([addr, data]), [], tok=self.newtok()))

    def bload(self, dst, voff, srd, soff=0, offset=0, mods=""):
        assert 0 <= offset < 4096
        op = {1: "buffer_load_dword", 2: "buffer_load_dwordx2", 4: "buffer_load_dwordx4"}[dst.n]
        text = f"{op} {dst}, {voff}, {srd}, {opstr(soff)} offen" + (f" offset:{offset}" if offset else "") + (" " + mods if mods else "")
        return self.add(Inst(text, "vload", regs_of([voff, srd, soff]), regs_of([dst]), tok=self.newtok()))

    def bstore(self, data, voff, srd, soff=0, offset=0, mods=""):
        assert 0 <= offset < 4096
        op = {1: "buffer_store_dword", 2: "buffer_store_dwordx2", 4: "buffer_store_dwordx4"}[data.n]
        text = f"{op} {data}, {voff}, {srd}, {opstr(soff)} offen" + (f" offset:{offset}" if offset else "") + (" " + mods if mods else "")
        return self.add(Inst(text, "vstore", regs_of([data, voff, srd, soff]), [], tok=self.newtok(), wide=data.n >= 3, ab=regs_of([data])))

    def dma(self, voff, srd, soff=0, mods=""):
        text = f"buffer_load_dwordx4 {voff}, {srd}, {opstr(soff)} offen lds" + (" " + mods if mods else "")
        return self.add(Inst(text, "dma", regs_of([voff, srd, soff, M0]), [], tok=self.newtok()))

    def raw(self, text, kind="salu", rd=(), wr=()):
        return self.add(Inst(text, kind, regs_of(rd), regs_of(wr)))

    def need(self, *insts):
        i = Inst("", "need")
        i.rd = []
        i.tok = [x.tok for x in insts]
        return self.add(i)

    def barrier(self):
        return self.add(Inst("s_barrier", "barrier"))

    def comment(self, c):
        return self.add(Inst("; " + c, "comment"))

    def label(self, name):
        return self.add(Inst(name + ":", "label"))


def finalize(insts, verbose=False):
    out = []
    vmq = []
    lgq = []
    slot = 0
    lastw = {}
    lastc = {}
    laststore = {}
    nnop = 0
    nwait = 0

    def emit(text, ws=1):
        nonlocal slot
        out.append(text)
        slot += ws

    for ins in insts:
        if ins.kind in ("comment", "label"):
            out.append(ins.text)
            continue
        needvm = None
        needlg = None
        touched = set(ins.rd) | set(ins.wr)
        toks = set(ins.tok) if ins.kind == "need" else set()
        for q, name in ((vmq, "vm"), (lgq, "lg")):
            req = None
            for pos, (tok, dst) in enumerate(q):
                if tok in toks or (dst & touched):
                    req = len(q) - 1 - pos
            if req is not None:
                if name == "vm":
                    needvm = req
                else:
                    needlg = req
        if needvm is not None or needlg is not None:
            parts = []
            if needvm is not None:
                assert needvm <= 63
                parts.append(f"vmcnt({needvm})")
                del vmq[: len(vmq) - needvm]
            if needlg is not None:
                needlg = min(needlg, 15)
                parts.append(f"lgkmcnt({needlg})")
                del lgq[: len(lgq) - needlg]
            emit("s_waitcnt " + " ".join(parts))
            nwait += 1
        if ins.kind == "need":
            continue
        req = 0

        def atleast(prod_slot, ws):
            nonlocal req
            req = max(req, prod_slot + 1 + ws)

        isvalu = ins.kind in ("valu", "trans", "permlane", "readlane")
        ismem = ins.kind in ("ds_read", "ds_write", "vload", "vstore", "dma")
        isvmem = ins.kind in ("vload", "vstore", "dma")
        for r in ins.rd:
            if r not in lastw:
                continue
            ps, pk, pp, pi = lastw[r]
            if pk in ("valu", "trans", "permlane", "readlane"):
                if r[0] in ("v", "a"):
                    if ins.kind == "mfma":
                        atleast(ps, 2)
                    if ins.kind == "permlane":
                        atleast(ps, 2)
                    if ins.kind == "readlane":
                        atleast(ps, 1)
                    if pk == "trans" and isvalu and ins.kind != "trans":
                        atleast(ps, 1)
                else:
                    if isvmem:
                        atleast(ps, 5)
                    if isvalu or ins.kind == "mfma":
                        atleast(ps, 2)
                    if ins.kind == "salu":
                        atleast(ps, 1)
            elif pk == "mfma":
                big = {4: 8, 8: 12}[pp]
                if ins.kind == "mfma":
                    if r in ins.ab:
                        atleast(ps, big)
                    else:
                        same = (pi.wr == ins.srcc) and pi.passes == ins.passes
                        if not same:
                            atleast(ps, {4: 6, 8: 10}[pp])
                else:
                    atleast(ps, big)
            elif pk == "salu":
                if r == ("m0", 0) and ins.kind == "dma":
                    atleast(ps, 1)
        for r in ins.wr:
            if r in lastw:
                ps, pk, pp, pi = lastw[r]
                if pk == "mfma" and ins.kind != "mfma":
                    atleast(ps, {4: 8, 8: 12}[pp])
                if pk == "mfma" and ins.kind == "mfma" and not (pi.wr == ins.wr and pi.passes == ins.passes):
                    atleast(ps, {4: 8, 8: 12}[pp])
            if r in lastc and ins.kind != "mfma":
                ps, pp = lastc[r]
                atleast(ps, {4: 3, 8: 7}[pp])
            if r in laststore:
                atleast(laststore[r], 2)
        if req > slot:
            n = req - slot
            nnop += n
            while n > 0:
                k = min(n, 16)
                emit(f"s_nop {k - 1}", k)
                n -= k
        myslot = slot
        emit(ins.text)
        for r in ins.wr:
            lastw[r] = (myslot, ins.kind, ins.passes, ins)
        if ins.kind == "mfma":
            for r in ins.srcc:
                lastc[r] = (myslot, ins.passes)
        if ins.kind == "vstore" and ins.wide:
            for r in ins.ab:
                laststore[r] = myslot
        if ins.kind in ("vload", "vstore", "dma"):
            vmq.append((ins.tok, set(ins.wr)))
            assert len(vmq) <= 63, "vmcnt overflow"
        if ins.kind in ("ds_read", "ds_write"):
            lgq.append((ins.tok, set(ins.wr)))
    if verbose:
        print(f"; finalize: {len(out)} lines, {nnop} nop states, {nwait} waits")
    return out
```

```python
import sys
from asmgen import *

STAMPS = "--stamps" in sys.argv
OUT = [a for a in sys.argv[1:] if not a.startswith("--")][0]

LOG2E = 1.4426950408889634
EPS = 1e-5

HT = 0
HROW, HPX = 5120, 272
CT = 51200
ST = CT + 49152
DUMMY = ST + 6144
RING = 107520
NRING = 13
NLAND = 12
LDS_BYTES = RING + 4 * NRING * 1024
assert LDS_BYTES <= 163840

SRD_XF, SRD_X, SRD_C, SRD_W1, SRD_W2, SRD_WC, SRD_OUT, SRD_DBG = [S(8 + 4 * i, 4) for i in range(8)]
ROWOFF = [S(40 + i) for i in range(10)]
sW = S(50)
sT = [S(52 + i) for i in range(12)]
sRING = S(64)
sLAND = S(65)
sL = S(66, 2)
sMASKHI = S(68, 2)
sSO = S(70)
sCROW = [S(72 + i) for i in range(6)]
sSTAMP = S(80, 2)
sT0 = S(82, 2)

_vn = [1]


def valloc(n=1, align=1):
    i = (_vn[0] + align - 1) // align * align
    _vn[0] = i + n
    assert _vn[0] <= 256, "out of vgprs"
    return V(i, n)


vTID = V(0)
vCD = [valloc(), valloc()]
vCDS = [valloc(), valloc()]
vXR, vX2, vX5, vX3 = valloc(), valloc(), valloc(), valloc()
vHR, vH2, vH5, vH3 = valloc(), valloc(), valloc(), valloc()
vCA = [valloc() for _ in range(8)]
vWD = valloc()
vTRL = valloc()
vTRR = valloc()
vBF = valloc()
vHHW = valloc()
vHHR = valloc()
vSTW = valloc()
vSTR = valloc()
vIF = [valloc(4, 4), valloc(4, 4)]
vW = [valloc(4, 4) for _ in range(8)]
vACC = [valloc(16, 4) for _ in range(6)]
vXF = [valloc(8, 4) for _ in range(6)]
vBUF = valloc(32, 4)
vT = [valloc() for _ in range(8)]
print("; vgprs used", _vn[0], file=sys.stderr)

def wfrag(q):
    if q < 64:
        return A(4 * q, 4)
    j = q - 64
    return vXF[j // 2][4 * (j % 2):4 * (j % 2) + 4]


def xffrag(cb, s):
    base = vACC[3] if cb < 2 else vACC[5]
    o = (cb % 2) * 8 + s * 4
    return base[o:o + 4]


PB_ROWS = {0: (1, 3), 1: (2, 4), 2: (5, 0), 4: (6, 8), 5: (9, 7)}
CB_ACC = [vACC[0], vACC[1], vACC[2], vACC[4]]
CB_ROW = [1, 2, 5, 6]

p = Stream()
stamp_n = [0]


def stamp(st):
    if not STAMPS:
        return
    k = stamp_n[0]
    stamp_n[0] += 1
    st.raw(f"s_memtime {sSTAMP}", wr=[sSTAMP])
    st.raw("s_waitcnt lgkmcnt(0)")
    st.salu("s_sub_u32", S(84 + k), sSTAMP[0], sT0[0])


p.raw("s_cmp_ge_u32 s2, 0x100")
p.raw("s_cbranch_scc1 L_end")
for i, srd in enumerate([SRD_XF, SRD_X, SRD_C, SRD_W1, SRD_W2, SRD_WC, SRD_OUT]):
    p.raw(f"s_load_dwordx2 {srd[0:2]}, s[0:1], {8 * i}", wr=[srd[0:2]])
if STAMPS:
    p.raw(f"s_load_dwordx2 {SRD_DBG[0:2]}, s[0:1], 64", wr=[SRD_DBG[0:2]])
    p.raw(f"s_memtime {sT0}", wr=[sT0])
    p.salu("s_mov_b32", SRD_DBG[2], 0x10000000)
    p.salu("s_mov_b32", SRD_DBG[3], 0x20000)
sizes = [8388608, 8388608, 8388608, 32768, 32768, 294912, 8388608]
for srd, sz in zip([SRD_XF, SRD_X, SRD_C, SRD_W1, SRD_W2, SRD_WC, SRD_OUT], sizes):
    p.salu("s_mov_b32", srd[2], sz)
    p.salu("s_mov_b32", srd[3], 0x20000)
t0, t1, t2, t3, t4, t5, t6, t7 = vT
p.valu("v_lshrrev_b32", t0, 6, vTID)
p.valu("v_readfirstlane_b32", sW, t0)
vLANE = vBUF[0]
vP = vBUF[1]
vHI = vBUF[2]
vP15 = vBUF[3]
vPH = vBUF[4]
vL15 = vBUF[5]
vL4 = vBUF[6]
p.valu("v_and_b32", vLANE, 63, vTID)
p.valu("v_and_b32", vP, 31, vTID)
p.valu("v_bfe_u32", vHI, vTID, 5, 1)
p.valu("v_and_b32", vP15, 15, vTID)
p.valu("v_bfe_u32", vPH, vTID, 4, 1)
p.valu("v_bfe_u32", vL4, vTID, 4, 2)
vL15 = vP15
sXCD, sIDX, sB, sTY, sTX, sBASE1, sY0 = sT[0:7]
p.salu("s_and_b32", sXCD, S(2), 7)
p.salu("s_lshr_b32", sIDX, S(2), 3)
p.salu("s_lshr_b32", sB, sXCD, 2)
p.salu("s_and_b32", sTY, sXCD, 3)
p.salu("s_lshl_b32", sTY, sTY, 2)
p.salu("s_lshr_b32", sT[7], sIDX, 3)
p.salu("s_add_u32", sTY, sTY, sT[7])
p.salu("s_and_b32", sTX, sIDX, 7)
p.salu("s_lshl_b32", sY0, sTY, 3)
p.salu("s_lshl_b32", sBASE1, sB, 22)
p.salu("s_lshl_b32", sT[7], sY0, 15)
p.salu("s_add_u32", sBASE1, sBASE1, sT[7])
p.salu("s_lshl_b32", sT[7], sTX, 12)
p.salu("s_add_u32", sBASE1, sBASE1, sT[7])
for Rr in range(10):
    if Rr == 1:
        p.salu("s_mov_b32", ROWOFF[1], sBASE1)
    elif Rr == 0:
        p.salu("s_sub_u32", ROWOFF[0], sBASE1, 32768)
    else:
        p.salu("s_add_u32", ROWOFF[Rr], sBASE1, (Rr - 1) * 32768)
p.raw(f"s_cmp_eq_u32 {sTY}, 0", rd=[sTY])
p.salu("s_cselect_b32", ROWOFF[0], 0x80000000, ROWOFF[0])
p.raw(f"s_cmp_eq_u32 {sTY}, 15", rd=[sTY])
p.salu("s_cselect_b32", ROWOFF[9], 0x80000000, ROWOFF[9])
p.raw(f"s_cmp_lt_u32 {sW}, 2", rd=[sW])
for pb, (ra, rb) in PB_ROWS.items():
    p.salu("s_cselect_b32", sCROW[pb], ROWOFF[ra], ROWOFF[rb])
p.salu("s_mul_i32", sRING, sW, NRING * 1024)
p.salu("s_add_u32", sRING, sRING, RING)
p.salu("s_mul_i32", sLAND, sW, NLAND * 1024)
p.salu("s_mov_b32", sL[0], f2u(LOG2E))
p.salu("s_mov_b32", sL[1], f2u(LOG2E))
p.salu("s_mov_b32", sMASKHI[0], 0xFFFF0000)
p.salu("s_mov_b32", sMASKHI[1], 0xFFFF0000)
sW64 = sT[8]
p.salu("s_lshl_b32", sW64, sW, 6)
p.valu("v_lshrrev_b32", t0, 2, vLANE)
p.valu("v_and_b32", t1, 3, vLANE)
p.valu("v_lshlrev_b32", t0, 8, t0)
p.valu("v_lshl_add_u32", t0, t1, 4, t0)
p.valu("v_add_u32", vWD, sW64, t0)
p.raw("s_waitcnt lgkmcnt(0)")

dma_w1 = []
for ks in range(8):
    p.salu("s_add_u32", M0, sRING, ks * 1024)
    p.salu("s_mov_b32", sSO, ks * 4096)
    dma_w1.append(p.dma(vWD, SRD_W1, sSO))

p.salu("s_and_b32", sT[9], sW, 1)
p.salu("s_lshl_b32", sT[9], sT[9], 3)
for i in range(2):
    p.valu("v_add_u32", t0, sT[9], vL4)
    if i:
        p.valu("v_add_u32", t0, 4, t0)
    p.valu("v_xor_b32", t1, t0, vL15)
    p.valu("v_lshlrev_b32", t1, 4, t1)
    p.valu("v_lshl_add_u32", vCD[i], t0, 8, t1)


def side_off(j, dst, hdst=None):
    a, b_, c_ = t5, t6, t7
    p.valu("v_cmp_le_u32", VCC, 10, j)
    p.valu("v_subrev_u32", a, 10, j)
    p.valu("v_cndmask_b32", a, j, a, VCC, extra_rd=[VCC])
    p.valu("v_mov_b32", b_, -1)
    p.valu("v_cndmask_b32", b_, b_, 16, VCC, extra_rd=[VCC]) if False else None
    p.valu("v_mov_b32", c_, 16)
    p.valu("v_cndmask_b32", b_, b_, c_, VCC, extra_rd=[VCC])
    if hdst is not None:
        p.valu("v_mul_u32_u24", hdst, HROW, a)
        p.valu("v_add_u32", c_, 1, b_)
        p.valu("v_mul_u32_u24", c_, HPX, c_)
        p.valu("v_add_u32", hdst, hdst, c_)
        p.valu("v_mov_b32", c_, DUMMY)
        p.valu("v_cmp_gt_u32", VCC, 20, j)
        p.valu("v_cndmask_b32", hdst, c_, hdst, VCC, extra_rd=[VCC])
    p.salu("s_sub_u32", sT[10], sY0, 1)
    p.valu("v_add_u32", a, sT[10], a)
    p.salu("s_lshl_b32", sT[10], sTX, 4)
    p.valu("v_add_u32", b_, sT[10], b_)
    p.valu("v_lshlrev_b32", c_, 15, a)
    p.valu("v_lshl_add_u32", c_, b_, 8, c_)
    p.salu("s_lshl_b32", sT[10], sB, 22)
    p.valu("v_add_u32", c_, sT[10], c_)
    p.valu("v_max_u32", a, a, b_)
    p.valu("v_cmp_gt_u32", S(sT[4].i + 0, 2) if False else VCC, 128, a)
    p.valu("v_mov_b32", b_, 0x80000000)
    p.valu("v_cndmask_b32", c_, b_, c_, VCC, extra_rd=[VCC])
    p.valu("v_cmp_gt_u32", VCC, 20, j)
    p.valu("v_cndmask_b32", dst, b_, c_, VCC, extra_rd=[VCC])


def c_dma(pb, st):
    res = []
    for i in range(2):
        st.salu("s_lshl_b32", sT[11], sW, 11)
        st.salu("s_add_u32", M0, sT[11], CT + (32 * pb + 4 * i) * 256)
        if pb == 3:
            res.append(st.dma(vCDS[i], SRD_C, 0))
        else:
            res.append(st.dma(vCD[i], SRD_C, sCROW[pb]))
    return res


p.valu("v_lshlrev_b32", t0, 8, vP15)
p.valu("v_lshl_add_u32", t0, vHI, 4, t0)
p.valu("v_add_u32", t0, sW64, t0)
p.valu("v_lshl_add_u32", vXR, vPH, 16, t0)

dma_c = {}
ld_x = {}


def x_load(pb, st):
    res = []
    for s in range(2):
        dst = vXF[pb][4 * s:4 * s + 4]
        if pb in (0, 1, 4):
            res.append(st.bload(dst, vXR, SRD_X, ROWOFF[PB_ROWS[pb][0]], 32 * s))
        else:
            res.append(st.bload(dst, {2: vX2, 5: vX5, 3: vX3}[pb], SRD_X, 0, 32 * s))
    return res


for pb in (0, 1):
    dma_c[pb] = c_dma(pb, p)
    ld_x[pb] = x_load(pb, p)
p.valu("v_cmp_eq_u32", VCC, 0, vPH)
for (dst, (ra, rb)) in ((vX2, PB_ROWS[2]), (vX5, PB_ROWS[5])):
    p.valu("v_mov_b32", t1, ROWOFF[rb])
    p.valu("v_mov_b32", t2, ROWOFF[ra])
    p.valu("v_cndmask_b32", t1, t1, t2, VCC, extra_rd=[VCC])
    p.valu("v_add_u32", dst, t1, t0)
dma_c[2] = c_dma(2, p)
ld_x[2] = x_load(2, p)
p.salu("s_lshl_b32", sT[9], sW, 3)
for i in range(2):
    p.valu("v_add_u32", t1, sT[9], vL4)
    if i:
        p.valu("v_add_u32", t1, 4, t1)
    side_off(t1, t2)
    p.valu("v_and_b32", t3, 15, t1)
    p.valu("v_xor_b32", t3, t3, vL15)
    p.valu("v_lshl_add_u32", vCDS[i], t3, 4, t2)
side_off(vP, t2, vH3)
p.valu("v_lshl_add_u32", t3, vHI, 4, sW64)
p.valu("v_add_u32", vX3, t2, t3)
p.valu("v_add_u32", vH3, vH3, t3)
dma_c[3] = c_dma(3, p)
ld_x[3] = x_load(3, p)

use_order = [(dj, ks, di) for dj in range(3) for ks in range(8) for di in range(3)]
NCH = 72 + 8
chunk_src = [("wc", ((di * 3 + dj) * 8 + ks) * 4096) for (dj, ks, di) in use_order] + [("w2", ks * 4096) for ks in range(8)]
chunk_dma = {}
chunk_slot = {}
chunk_tr = {}


def issue_chunk(f, zone, slot, st):
    src, off = chunk_src[f]
    st.salu("s_add_u32", M0, sLAND if zone == "L" else sRING, slot * 1024)
    st.salu("s_mov_b32", sSO, off)
    chunk_dma[f] = st.dma(vWD, SRD_WC if src == "wc" else SRD_W2, sSO)
    chunk_slot[f] = (zone, slot)


def read_chunk(f, st):
    zone, slot = chunk_slot[f]
    dst = wfrag(f) if f < 72 else vW[f - 72]
    st.need(chunk_dma[f])
    base = vTRL if zone == "L" else vTRR
    a = st.ds_read("ds_read_b64_tr_b16", dst[0:2], base, slot * 1024)
    b = st.ds_read("ds_read_b64_tr_b16", dst[2:4], base, slot * 1024 + 256)
    chunk_tr[f] = (a, b)


nxt = 0
for sl in range(NLAND):
    issue_chunk(nxt, "L", sl, p)
    nxt += 1
for sl in range(8, NRING):
    issue_chunk(nxt, "R", sl, p)
    nxt += 1
for pb in (4, 5):
    dma_c[pb] = c_dma(pb, p)
    ld_x[pb] = x_load(pb, p)

p.valu("v_lshrrev_b32", t1, 2, vL15)
p.valu("v_lshl_add_u32", t1, vHI, 3, t1)
p.valu("v_lshlrev_b32", t1, 6, t1)
p.valu("v_and_b32", t2, 1, vTID)
p.valu("v_bfe_u32", t4, vTID, 1, 1)
p.valu("v_lshl_add_u32", t2, t2, 1, t4)
p.valu("v_lshl_add_u32", t2, vPH, 2, t2)
p.valu("v_lshl_add_u32", t1, t2, 3, t1)
p.valu("v_add_u32", vTRL, sLAND, t1)
p.valu("v_add_u32", vTRR, sRING, t1)
p.valu("v_xor_b32", t1, vHI, vP15)
p.valu("v_lshlrev_b32", t1, 4, t1)
p.valu("v_lshl_add_u32", t1, vP, 8, t1)
p.valu("v_add_u32", vCA[0], CT, t1)
assert CT % 256 == 0
for ks in range(1, 8):
    p.valu("v_xor_b32", vCA[ks], 32 * ks, vCA[0])
p.valu("v_mul_u32_u24", t1, HPX, vP15)
p.valu("v_add_u32", t1, t1, t3)
p.valu("v_add_u32", t1, HPX, t1)
p.valu("v_mul_u32_u24", t2, 2 * HROW, vPH)
p.valu("v_add_u32", vHR, t1, t2)
p.valu("v_cmp_eq_u32", VCC, 0, vPH)
for (dst, (ra, rb)) in ((vH2, PB_ROWS[2]), (vH5, PB_ROWS[5])):
    p.valu("v_mov_b32", t2, rb * HROW)
    p.valu("v_mov_b32", t4, ra * HROW)
    p.valu("v_cndmask_b32", t2, t2, t4, VCC, extra_rd=[VCC])
    p.valu("v_add_u32", dst, t1, t2)
p.valu("v_mul_u32_u24", t1, HPX, vP15)
p.valu("v_lshl_add_u32", t1, vHI, 4, t1)
p.valu("v_mul_u32_u24", t2, 2 * HROW, vPH)
p.valu("v_add_u32", vBF, t1, t2)
p.valu("v_mul_u32_u24", t1, HPX, vP)
p.valu("v_add_u32", t1, CT, t1)
p.valu("v_add_u32", vHHW, t1, t3)
p.valu("v_lshl_add_u32", vHHR, vHI, 4, t1)
p.valu("v_lshlrev_b32", t1, 5, vP)
p.valu("v_add_u32", vSTR, ST, t1)
p.salu("s_lshl_b32", sT[9], sW, 3)
p.valu("v_lshl_add_u32", t1, vHI, 2, vSTR)
p.valu("v_add_u32", vSTW, sT[9], t1)
p.valu("v_bfe_u32", t1, vTID, 2, 1)
p.valu("v_bfe_u32", t2, vTID, 3, 1)
p.valu("v_bfe_u32", t4, vTID, 1, 1)
p.valu("v_lshl_add_u32", t2, t2, 1, t4)
p.valu("v_lshl_add_u32", t2, vPH, 2, t2)
p.valu("v_and_b32", t4, 1, vTID)
p.valu("v_lshlrev_b32", t4, 4, t4)
p.valu("v_lshlrev_b32", t4, t4, 0x3F80) if False else None
p.valu("v_mov_b32", t5, 0x3F80)
p.valu("v_lshlrev_b32", t4, t4, t5)
p.valu("v_cmp_eq_u32", VCC, t1, vHI)
p.valu("v_cndmask_b32", t4, 0, t4, VCC, extra_rd=[VCC])
for s in range(2):
    for d in range(4):
        p.valu("v_cmp_eq_u32", VCC, 4 * s + d, t2)
        p.valu("v_cndmask_b32", vIF[s][d], 0, t4, VCC, extra_rd=[VCC])

stamp(p)
p.need(*dma_w1)
tr_w1 = []
for ks in range(8):
    tr_w1.append(p.ds_read("ds_read_b64_tr_b16", vW[ks][0:2], vTRR, ks * 1024))
    tr_w1.append(p.ds_read("ds_read_b64_tr_b16", vW[ks][2:4], vTRR, ks * 1024 + 256))
stamp(p)


def z1_block(pb, st):
    acc = vACC[pb]
    first = True
    for half in range(2):
        for k in range(4):
            ks = half * 4 + k
            st.ds_read("ds_read_b128", vBUF[4 * (ks % 8):4 * (ks % 8) + 4], vCA[ks], pb * 8192)
    for s in range(2):
        st.mfma32(acc, vIF[s], vXF[pb][4 * s:4 * s + 4], 0 if s == 0 else acc)
    for ks in range(8):
        st.mfma32(acc, vW[ks], vBUF[4 * ks:4 * ks + 4], acc)


def stats_block(pb, st):
    acc = vACC[pb]
    s1, s2, s1b, s2b = vT[0], vT[1], vT[2], vT[3]
    st.valu("v_add_f32", s1, acc[0], acc[1])
    st.valu("v_mul_f32", s2, acc[0], acc[0])
    st.valu("v_add_f32", s1b, acc[2], acc[3])
    st.valu("v_mul_f32", s2b, acc[1], acc[1])
    for r in range(2, 16):
        st.valu("v_fmac_f32", s2 if r % 2 == 0 else s2b, acc[r], acc[r])
        if r >= 4:
            st.valu("v_add_f32", s1 if r % 2 == 0 else s1b, acc[r], s1 if r % 2 == 0 else s1b)
    st.valu("v_add_f32", s1, s1, s1b)
    st.valu("v_add_f32", s2, s2, s2b)
    st.valu("v_permlane32_swap_b32", s1, s2)
    st.valu("v_add_f32", s1, s1, s2)
    return st.ds_write("ds_write_b32", vSTW, s1, pb * 1024)


def norm_block(pb, st, tb):
    acc = vACC[pb]
    q = vBUF[tb:tb + 8]
    st.ds_read("ds_read_b128", q[0:4], vSTR, pb * 1024)
    st.ds_read("ds_read_b128", q[4:8], vSTR, pb * 1024 + 16)
    st.valu("v_pk_add_f32", q[0:2], q[0:2], q[2:4])
    st.valu("v_pk_add_f32", q[4:6], q[4:6], q[6:8])
    st.valu("v_pk_add_f32", q[0:2], q[0:2], q[4:6])
    mean, var, a, b = q[0], q[1], q[2], q[3]
    st.valu("v_mul_f32", mean, 1.0 / 128, mean)
    st.valu("v_mul_f32", var, 1.0 / 128, var)
    st.valu("v_fma_f32", var, Neg(mean), mean, var)
    st.valu("v_max_f32", var, 0, var)
    st.valu("v_add_f32", var, EPS, var)
    st.valu("v_rsq_f32", a, var)
    st.valu("v_mul_f32", a, LOG2E, a)
    st.valu("v_mul_f32", b, Neg(mean), a) if False else st.valu("v_mul_f32_e64", b, Neg(mean), a)
    ab = q[2:4]
    out = vBUF[tb + 8:tb + 16]
    y = q[4:6]
    e = q[6:8]
    for r2 in range(8):
        st.valu("v_pk_fma_f32", y, acc[2 * r2:2 * r2 + 2], ab, ab, mods="op_sel:[0,0,1] op_sel_hi:[1,0,1]")
        st.valu("v_exp_f32_e64", e[0], Neg(y[0]))
        st.valu("v_exp_f32_e64", e[1], Neg(y[1]))
        st.valu("v_pk_fma_f32", e, e, sL, sL)
        st.valu("v_rcp_f32", e[0], e[0])
        st.valu("v_rcp_f32", e[1], e[1])
        st.valu("v_pk_mul_f32", y, y, e)
        st.valu("v_cvt_pk_bf16_f32", out[r2], y[0], y[1])
    if pb in (0, 1, 4):
        base, off = vHR, PB_ROWS[pb][0] * HROW
    else:
        base, off = {2: vH2, 5: vH5, 3: vH3}[pb], 0
    w0 = st.ds_write("ds_write_b128", base, out[0:4], off)
    w1 = st.ds_write("ds_write_b128", base, out[4:8], off + 32)
    return [w0, w1]


ring_free = list(range(8))
pending_free = []


def refill(st, n):
    global nxt
    for _ in range(n):
        if nxt >= NCH or not ring_free:
            return
        sl = ring_free.pop(0)
        issue_chunk(nxt, "R", sl, st)
        nxt += 1


rd_next = [0]


def drain(st, n):
    done = []
    for _ in range(n):
        f = rd_next[0]
        if f >= nxt or f >= NCH:
            break
        read_chunk(f, st)
        done.append(f)
        rd_next[0] += 1
    trs = [t for f in done for t in chunk_tr[f]]
    if trs:
        st.need(*trs)
    for f in done:
        z, sl = chunk_slot[f]
        if z == "R":
            ring_free.append(sl)


p.need(*tr_w1)
refill(p, 8)

hw = []
for grp in ((0, 1, 2, 3), (4, 5)):
    p.need(*[d for pb in grp for d in dma_c[pb]])
    p.barrier()
    stamp(p)
    if grp[0] == 0:
        drain(p, NLAND + (NRING - 8))
        refill(p, 13)
    sw = []
    for pb in grp:
        z1_block(pb, p)
        sw.append(stats_block(pb, p))
    p.need(*sw)
    p.barrier()
    stamp(p)
    for n, pb in enumerate(grp):
        hw += norm_block(pb, p, 16 * (n % 2))
    drain(p, 8)
    refill(p, 13)
    stamp(p)
for r in range(16):
    p.valu("v_cndmask_b32", vACC[2][r], vACC[2][r], vACC[5][r], sMASKHI)
p.need(*hw)
p.barrier()
stamp(p)

ld_xf = {}
for cb in range(4):
    for s in range(2):
        ld_xf[(cb, s)] = None


def bread(g, dj, ks, st):
    for s in range(4):
        st.ds_read("ds_read_b128", vBUF[16 * g + 4 * s:16 * g + 4 * s + 4], vBF, (4 * g + s) * HROW + dj * HPX + 32 * ks)


steps = [(dj, ks) for dj in range(3) for ks in range(8)]
bread(0, *steps[0], p)
for n, (dj, ks) in enumerate(steps):
    while rd_next[0] < min(3 * n + 3 + 9, NCH) and rd_next[0] < nxt:
        drain(p, 3)
        refill(p, 3)
    bread(1, dj, ks, p)
    for di in range(3):
        f = 3 * n + di
        p.mfma32(CB_ACC[0], wfrag(f), vBUF[4 * di:4 * di + 4], CB_ACC[0])
        p.mfma32(CB_ACC[1], wfrag(f), vBUF[4 * (di + 1):4 * (di + 1) + 4], CB_ACC[1])
    if n + 1 < len(steps):
        bread(0, *steps[n + 1], p)
    for di in range(3):
        f = 3 * n + di
        p.mfma32(CB_ACC[2], wfrag(f), vBUF[16 + 4 * di:16 + 4 * di + 4], CB_ACC[2])
        p.mfma32(CB_ACC[3], wfrag(f), vBUF[16 + 4 * (di + 1):16 + 4 * (di + 1) + 4], CB_ACC[3])
    if n == 12:
        for cb in range(4):
            for s in range(2):
                ld_xf[(cb, s)] = p.bload(xffrag(cb, s), vXR, SRD_XF, ROWOFF[CB_ROW[cb]], 32 * s)
while rd_next[0] < NCH:
    drain(p, 8)
    refill(p, 8)
stamp(p)

ww = []
for cb in range(4):
    o = vBUF[8 * cb:8 * cb + 8]
    for r2 in range(8):
        p.valu("v_cvt_pk_bf16_f32", o[r2], CB_ACC[cb][2 * r2], CB_ACC[cb][2 * r2 + 1])
    ww.append(p.ds_write("ds_write_b128", vHHW, o[0:4], cb * 32 * HPX))
    ww.append(p.ds_write("ds_write_b128", vHHW, o[4:8], cb * 32 * HPX + 32))
p.need(*ww)
p.barrier()
stamp(p)
for cb in range(4):
    acc = CB_ACC[cb]
    for ks in range(8):
        p.ds_read("ds_read_b128", vBUF[4 * ks:4 * ks + 4], vHHR, cb * 32 * HPX + 32 * ks)
    for s in range(2):
        p.mfma32(acc, vIF[s], xffrag(cb, s), 0 if s == 0 else acc)
    for ks in range(8):
        p.mfma32(acc, vW[ks], vBUF[4 * ks:4 * ks + 4], acc)
for cb in range(4):
    acc = CB_ACC[cb]
    o = vXF[cb]
    for r2 in range(8):
        p.valu("v_cvt_pk_bf16_f32", o[r2], acc[2 * r2], acc[2 * r2 + 1])
    p.bstore(o[0:4], vXR, SRD_OUT, ROWOFF[CB_ROW[cb]], 0)
    p.bstore(o[4:8], vXR, SRD_OUT, ROWOFF[CB_ROW[cb]], 32)
stamp(p)
if STAMPS:
    p.raw("s_waitcnt vmcnt(0)")
    stamp(p)
    p.salu("s_lshl_b32", sT[0], S(2), 2)
    p.salu("s_add_u32", sT[0], sT[0], sW)
    p.salu("s_lshl_b32", sT[0], sT[0], 6)
    p.raw("s_mov_b64 exec, 1")
    for k in range(stamp_n[0]):
        p.valu("v_mov_b32", t0, S(84 + k))
        p.valu("v_mov_b32", t1, sT[0])
        p.bstore(t0, t1, SRD_DBG, 0, 4 * k)
        p.raw("s_waitcnt vmcnt(0)")
p.label("L_end")

lines = finalize(p.I, verbose=False)
hdr = open("standalone__controlnet__diffusion.s.ref").read().split("; Override launch")[0]
s = hdr + f"; @launch grid=(256,1,1) block=(256,1,1) lds={LDS_BYTES}\n"
s += """.amdgcn_target "amdgcn-amd-amdhsa--gfx950"
.text
.globl standalone__controlnet__diffusion_kernel
.p2align 8
.type standalone__controlnet__diffusion_kernel,@function
standalone__controlnet__diffusion_kernel:
"""
s += "\n".join(("  " + l if not l.endswith(":") else l) for l in lines) + "\n"
s += """  s_endpgm
.section .rodata,"a"
.p2align 6
.amdhsa_kernel standalone__controlnet__diffusion_kernel
  .amdhsa_next_free_vgpr 512
  .amdhsa_next_free_sgpr 102
  .amdhsa_accum_offset 256
  .amdhsa_group_segment_fixed_size 0
  .amdhsa_kernarg_size 72
  .amdhsa_user_sgpr_count 2
  .amdhsa_user_sgpr_kernarg_segment_ptr 1
  .amdhsa_system_sgpr_workgroup_id_x 1
.end_amdhsa_kernel
"""
open(OUT, "w").write(s)
print("lines", len(lines), file=sys.stderr)
```
